```python
import torch

def _softmax(x, axis=-1):
    return torch.softmax(x, dim=axis)
def _gelu(x):
    return torch.nn.functional.gelu(x, approximate="tanh")
def _silu(x):
    return torch.nn.functional.silu(x)
def _sigmoid(x):
    return torch.sigmoid(x)
def _layernorm(x, axis=-1, eps=1e-5):
    m = x.mean(dim=axis, keepdim=True)
    v = x.var(dim=axis, keepdim=True, unbiased=False)
    return (x - m) / torch.sqrt(v + eps)
def _scatter_add(tgt, idx, src, axis=0):
    return tgt.clone().index_add_(axis, idx, src)
def _segment_sum(src, seg, n):
    out = torch.zeros((n,) + src.shape[1:], dtype=src.dtype)
    return out.index_add_(0, seg, src)
def _pad(x, pw):
    flat = tuple(v for pair in reversed(pw) for v in pair)
    return torch.nn.functional.pad(x, flat)

kernel_name = 'gated_mix__sliding_block_cached__dense_activation_mish__decode'

def setup_inputs():

    _w = (lambda a: (lambda t: t.to(torch.bfloat16) if t.is_floating_point() else t)(torch.as_tensor(a)))
    def _A_setup():
        B, Sq, D = 1, 1, 512
        Hq, Hkv, Sk, Dh = 32, 8, 65536, 128
        assert Hq % Hkv == 0, (Hq, Hkv)
        return {
            "x": _w((lambda *s: torch.randn(*s, dtype=torch.bfloat16) * 0.05)(B, Sq, D)),
            "k_cache": _w((lambda *s: torch.randn(*s, dtype=torch.bfloat16) * 6.4)(B, Hkv, Sk, Dh)),
            "v_cache": _w((lambda *s: torch.randn(*s, dtype=torch.bfloat16) * 0.4)(B, Hkv, Sk, Dh)),
            "wq": _w((lambda *s: torch.randn(*s, dtype=torch.bfloat16) * 6.4)(D, Hq * Dh) * (D ** -0.5)),
            "wo": _w((lambda *s: torch.randn(*s, dtype=torch.bfloat16) * 0.4)(Hq * Dh, D) * ((Hq * Dh) ** -0.5)),
        }
    _A_in = _A_setup()

    def _B_setup():
        B, S, D, F = 1, 1, 512, 1792
        return {
            "x": _w((lambda *s: torch.randn(*s, dtype=torch.bfloat16) * 0.05)(B, S, D)),
            "w1": _w((lambda *s: torch.randn(*s, dtype=torch.bfloat16) * 12.8)(D, F) * (D ** -0.5)),
            "b1": _w((lambda *s: torch.randn(*s, dtype=torch.bfloat16) * 0.05)(F)),
            "w2": _w((lambda *s: torch.randn(*s, dtype=torch.bfloat16) * 0.05)(F, D) * (F ** -0.5)),
        }
    _B_in = _B_setup()

    return {
        "A_x": _A_in["x"],
        "A_k_cache": _A_in["k_cache"],
        "A_v_cache": _A_in["v_cache"],
        "A_wq": _A_in["wq"],
        "A_wo": _A_in["wo"],
        "B_x": _B_in["x"],
        "B_w1": _B_in["w1"],
        "B_b1": _B_in["b1"],
        "B_w2": _B_in["w2"],
        "gate_w": _w((lambda *s: torch.randn(*s, dtype=torch.bfloat16) * 0.05)(512) * 16.0),
    }

def reference(A_x, A_k_cache, A_v_cache, A_wq, A_wo, B_x, B_w1, B_b1, B_w2, gate_w):
    def _A_ref(x, k_cache, v_cache, wq, wo):
        B, Sq, D = x.shape
        Hq, Dh = 32, 128
        Hkv, Sk = k_cache.shape[1], k_cache.shape[2]
        W = min(4096, max(256, Sk // 4))
        rep = Hq // Hkv
        q = (lambda x, *d: x.permute(*d))((x @ wq).reshape(B, Sq, Hq, Dh), 0, 2, 1, 3)
        k = (lambda x, n, axis: torch.repeat_interleave(x, n, dim=axis))(k_cache[:, :, Sk - W:, :], rep, axis=1)
        v = (lambda x, n, axis: torch.repeat_interleave(x, n, dim=axis))(v_cache[:, :, Sk - W:, :], rep, axis=1)
        scores = torch.einsum("bhqd,bhkd->bhqk", q, k) * (Dh ** -0.5)
        p = _softmax(scores, axis=-1)
        o = torch.einsum("bhqk,bhkd->bhqd", p, v)
        return (lambda x, *d: x.permute(*d))(o, 0, 2, 1, 3).reshape(B, Sq, Hq * Dh) @ wo

    def _B_ref(x, w1, b1, w2):
        h = torch.einsum("bsd,df->bsf", x, w1) + b1
        sp = torch.log1p(torch.exp(-torch.abs(h))) + torch.where(h > 0, h, torch.zeros_like(h))
        act = h * torch.tanh(sp)
        return torch.einsum("bsf,fd->bsd", act, w2)

    x = A_x
    g = _sigmoid((x * gate_w).sum(-1, keepdims=True))
    a = _A_ref(x, A_k_cache, A_v_cache, A_wq, A_wo)
    b = _B_ref(x, B_w1, B_b1, B_w2)
    return g * a + (1 - g) * b
```

```python
NAME = "gated_mix__sliding_block_cached__dense_activation_mish__decode"
HDR = open("cdna_kernels/%s.s.ref" % NAME).read().split("; Override launch")[0]

class Asm:
    def __init__(self):
        self.lines = []
    def __call__(self, s):
        for l in s.strip("\n").split("\n"):
            self.lines.append("    " + l.strip() if not l.strip().endswith(":") else l.strip())
    def label(self, n):
        self.lines.append(n + ":")
    def text(self):
        return "\n".join(self.lines) + "\n"

def wrap(body, grid, block, lds, vgpr, sgpr=102, accum=None, name=NAME + "_kernel"):
    if accum is None:
        accum = (vgpr + 3) // 4 * 4
    return (HDR + "; @launch grid=(%d,1,1) block=(%d,1,1) lds=%d\n" % (grid, block, lds) +
        '.amdgcn_target "amdgcn-amd-amdhsa--gfx950"\n.text\n.globl %s\n.p2align 8\n.type %s,@function\n%s:\n' % (name, name, name) +
        body +
        '.section .rodata,"a"\n.p2align 6\n.amdhsa_kernel %s\n' % name +
        "  .amdhsa_next_free_vgpr %d\n  .amdhsa_next_free_sgpr %d\n  .amdhsa_accum_offset %d\n" % (vgpr, sgpr, accum) +
        "  .amdhsa_group_segment_fixed_size 0\n  .amdhsa_kernarg_size 104\n  .amdhsa_user_sgpr_count 2\n"
        "  .amdhsa_user_sgpr_kernarg_segment_ptr 1\n  .amdhsa_system_sgpr_workgroup_id_x 1\n"
        "  .amdhsa_float_denorm_mode_32 3\n"
        ".end_amdhsa_kernel\n")
```

```python
import sys
from agen import *

class R:
    def __init__(self, start=0): self.n = start; self.names = {}
    def __call__(self, name, cnt=1, align=1):
        self.n = (self.n + align - 1) // align * align
        b = self.n; self.n += cnt; self.names[name] = b
        return b

def vr(b, n): return "v[%d:%d]" % (b, b + n - 1)
FULL = "row_mask:0xf bank_mask:0xf"

EPOCH = 0
Q1 = 0x1000
H1 = Q1 + 0x10000
ML = H1 + 0x10000
O3 = ML + 0x2000
O2 = O3 + 0x10000
STAMP = 0x10000000
L_QH = 0
L_QB = 4096
L_MS = 5632
L_LS = 5760
L_G = 5888
L_OP = 6144
L_OUT = L_OP + 16384
LDS = L_OUT + 2048
SPIN = 200000

def gen(stamps=False):
    a = Asm()
    v = R(1)
    nst = [0]
    def stamp():
        if stamps:
            a("s_memrealtime s[%d:%d]" % (64 + 2*nst[0], 65 + 2*nst[0])); nst[0] += 1
    sX, sK, sV, sWQ, sWO, sW1, sB1, sW2, sGW, sOUT, sWS = 4, 6, 8, 10, 12, 16, 18, 20, 22, 24, 28
    sH, sJ, sRG, sCG, sW, sFG, sMLP, sTAG = 30, 31, 32, 33, 34, 35, 36, 37
    sT0, sT1, sT2 = 38, 39, 40
    sSELLO, sSELHI, sSELA, sSELB, sMASKB = 41, 42, 43, 44, 45
    sM1, sM2, sM3, sM0 = 46, 48, 50, 52
    sSPIN = 54
    sC1, sC2 = 55, 56
    sEX = 58
    sHD = 60
    def sp(x): return "s[%d:%d]" % (x, x + 1)
    lane = v("lane"); lr = v("lr"); lc = v("lc"); t0 = v("t0"); t1 = v("t1"); t2 = v("t2"); t3 = v("t3")
    aWQ0 = v("aWQ0"); aWQ1 = v("aWQ1"); aXP = v("aXP"); aW1 = v("aW1"); aX1 = v("aX1")
    aK = v("aK"); aV = v("aV"); aWO0 = v("aWO0"); aWO1 = v("aWO1"); aW2 = v("aW2"); aB1 = v("aB1")
    aP = v("aP"); aP2 = v("aP2")
    xp = v("xp"); x1 = v("x1"); b1 = v("b1")
    tg = v("tg", 4, 2)
    WQ = v("WQ", 8, 4); W1 = v("W1", 4, 4); K = v("K", 16, 4); V = v("V", 16, 4); WO = v("WO", 8, 4); W2 = v("W2", 4, 4)
    A = v("A", 16, 4)
    B = v("B", 16, 4)
    PQ = v("PQ", 4, 4); PH = v("PH", 4, 4)
    ACCB = v("ACCB", 8, 4)
    GX = WO; GG = WO + 4
    nv = v.n

    stamp()
    a("""
    s_cmp_ge_u32 s2, 256
    s_cbranch_scc1 L_end
    s_load_dwordx16 s[4:19], s[0:1], 0
    s_load_dwordx8 s[20:27], s[0:1], 64
    s_load_dwordx2 s[28:29], s[0:1], 96
    """)
    a(f"""
    v_lshrrev_b32 v{t0}, 6, v0
    v_and_b32 v{lane}, 63, v0
    s_and_b32 s{sH}, s2, 7
    v_readfirstlane_b32 s{sW}, v{t0}
    s_lshr_b32 s{sJ}, s2, 3
    s_lshr_b32 s{sRG}, s2, 6
    s_and_b32 s{sCG}, s{sJ}, 7
    v_lshrrev_b32 v{lr}, 3, v{lane}
    v_and_b32 v{lc}, 7, v{lane}
    v_lshlrev_b32 v{lc}, 4, v{lc}
    """)
    a(f"""
    s_lshl_b32 s{sT0}, s{sRG}, 7
    s_lshl_b32 s{sT1}, s{sW}, 4
    s_add_u32 s{sT0}, s{sT0}, s{sT1}
    v_lshl_add_u32 v{t0}, v{lr}, 1, s{sT0}
    s_lshl_b32 s{sT1}, s{sH}, 10
    s_lshl_b32 s{sT2}, s{sCG}, 7
    s_add_u32 s{sT1}, s{sT1}, s{sT2}
    v_lshl_add_u32 v{aWQ0}, v{t0}, 13, v{lc}
    v_add_u32 v{aWQ0}, s{sT1}, v{aWQ0}
    v_add_u32 v{aWQ1}, 0x2000, v{aWQ0}
    v_lshlrev_b32 v{aXP}, 1, v{t0}
    """)
    a(f"""
    s_lshl_b32 s{sFG}, s{sRG}, 3
    s_add_u32 s{sFG}, s{sFG}, s{sH}
    s_cmp_lt_u32 s{sFG}, 28
    s_cselect_b32 s{sMLP}, -1, 0
    s_lshl_b32 s{sT0}, s{sCG}, 6
    s_lshl_b32 s{sT1}, s{sW}, 3
    s_add_u32 s{sT0}, s{sT0}, s{sT1}
    v_add_u32 v{t0}, s{sT0}, v{lr}
    v_lshlrev_b32 v{aX1}, 1, v{t0}
    v_mul_u32_u24 v{aW1}, 3584, v{t0}
    s_lshl_b32 s{sT0}, s{sFG}, 7
    v_add3_u32 v{aW1}, v{aW1}, v{lc}, s{sT0}
    v_and_b32 v{aW1}, s{sMLP}, v{aW1}
    """)
    a(f"""
    s_lshl_b32 s{sT0}, s{sH}, 24
    s_lshl_b32 s{sT1}, s{sJ}, 15
    s_add_u32 s{sT0}, s{sT0}, s{sT1}
    s_lshl_b32 s{sT1}, s{sW}, 12
    s_add_u32 s{sT0}, s{sT0}, s{sT1}
    s_add_u32 s{sT0}, s{sT0}, 0xf00000
    v_lshl_add_u32 v{aV}, v{lane}, 4, s{sT0}
    v_and_b32 v{t0}, 3, v{lane}
    v_lshl_add_u32 v{aK}, v{t0}, 4, s{sT0}
    v_bfe_u32 v{t0}, v{lane}, 2, 2
    v_lshl_add_u32 v{aK}, v{t0}, 8, v{aK}
    v_lshrrev_b32 v{t0}, 4, v{lane}
    v_lshl_add_u32 v{aK}, v{t0}, 6, v{aK}
    v_lshlrev_b32 v{t1}, 4, v{lane}
    s_cmp_eq_u32 s{sW}, 2
    s_waitcnt lgkmcnt(0)
    s_cbranch_scc0 L_nog
    global_load_dwordx4 {vr(GX,4)}, v{t1}, {sp(sX)}
    global_load_dwordx4 {vr(GG,4)}, v{t1}, {sp(sGW)}
    L_nog:
    global_load_dwordx4 {vr(WQ,4)}, v{aWQ0}, {sp(sWQ)} nt
    global_load_dwordx4 {vr(WQ+4,4)}, v{aWQ1}, {sp(sWQ)} nt
    global_load_dwordx4 {vr(W1,4)}, v{aW1}, {sp(sW1)} nt
    global_load_dword v{xp}, v{aXP}, {sp(sX)}
    global_load_ushort v{x1}, v{aX1}, {sp(sX)}
    s_load_dword s{sTAG}, {sp(sWS)}, {EPOCH}
    s_barrier
    """)
    for t in range(4):
        a(f"global_load_dwordx4 {vr(K+4*t,4)}, v{aK}, {sp(sK)} offset:{1024*t} nt")
    stamp()
    a(f"""
    s_mov_b32 s{sSELLO}, 0x05040100
    s_mov_b32 s{sSELHI}, 0x07060302
    s_mov_b32 s{sSELA}, 0x0c0c0400
    s_mov_b32 s{sSELB}, 0x04000c0c
    s_mov_b32 s{sMASKB}, 0xffffff00
    s_mov_b32 s{sM0}, 0x11111111
    s_mov_b32 s{sM0+1}, 0x11111111
    s_mov_b32 s{sM1}, 0x22222222
    s_mov_b32 s{sM1+1}, 0x22222222
    s_mov_b32 s{sM2}, 0x44444444
    s_mov_b32 s{sM2+1}, 0x44444444
    s_mov_b32 s{sM3}, 0x88888888
    s_mov_b32 s{sM3+1}, 0x88888888
    s_mov_b32 s{sSPIN}, 0
    s_lshl_b32 s{sHD}, s{sH}, 2
    s_add_u32 s{sHD}, s{sHD}, s{sRG}
    """)
    a(f"""
    s_and_b32 s{sT0}, s{sW}, 3
    s_lshl_b32 s{sT0}, s{sT0}, 5
    s_and_b32 s{sT1}, s{sW}, 4
    s_add_u32 s{sT0}, s{sT0}, s{sT1}
    s_lshl_b32 s{sT1}, s{sHD}, 7
    s_add_u32 s{sT0}, s{sT0}, s{sT1}
    v_lshrrev_b32 v{t0}, 2, v{lr}
    v_lshl_add_u32 v{t0}, v{t0}, 4, s{sT0}
    v_and_b32 v{t1}, 3, v{lr}
    v_add_u32 v{t0}, v{t0}, v{t1}
    s_lshl_b32 s{sT2}, s{sCG}, 7
    v_lshl_add_u32 v{aWO0}, v{t0}, 10, v{lc}
    v_add_u32 v{aWO0}, s{sT2}, v{aWO0}
    v_add_u32 v{aWO1}, 0x2000, v{aWO0}
    """)
    a(f"""
    s_lshl_b32 s{sT0}, s{sFG}, 6
    s_lshl_b32 s{sT1}, s{sW}, 3
    s_add_u32 s{sT0}, s{sT0}, s{sT1}
    v_add_u32 v{t0}, s{sT0}, v{lr}
    v_lshlrev_b32 v{aB1}, 1, v{t0}
    v_and_b32 v{aB1}, s{sMLP}, v{aB1}
    v_lshl_add_u32 v{aW2}, v{t0}, 10, v{lc}
    v_add_u32 v{aW2}, s{sT2}, v{aW2}
    v_and_b32 v{aW2}, s{sMLP}, v{aW2}
    """)
    a(f"""
    s_waitcnt lgkmcnt(0)
    s_add_u32 s{sTAG}, s{sTAG}, 0x9e3779b9
    s_and_b32 s{sT0}, s{sTAG}, 0xff
    v_mov_b32 v{tg}, s{sT0}
    s_bfe_u32 s{sT0}, s{sTAG}, 0x80008
    v_mov_b32 v{tg+1}, s{sT0}
    s_bfe_u32 s{sT0}, s{sTAG}, 0x80010
    v_mov_b32 v{tg+2}, s{sT0}
    s_lshr_b32 s{sT0}, s{sTAG}, 24
    v_mov_b32 v{tg+3}, s{sT0}
    """)
    a(f"""
    s_lshl_b32 s{sT0}, s{sW}, 9
    v_lshl_add_u32 v{aP}, v{lc}, 1, s{sT0}
    v_and_b32 v{t0}, 1, v{lr}
    v_lshl_add_u32 v{aP}, v{t0}, 8, v{aP}
    v_lshrrev_b32 v{t0}, 1, v{lr}
    v_lshl_add_u32 v{aP}, v{t0}, 3, v{aP}
    s_waitcnt vmcnt(4)
    """)
    stamp()
    for q in range(4):
        a(f"v_perm_b32 v{B+2*q}, v{WQ+4+q}, v{WQ+q}, s{sSELLO}")
        a(f"v_perm_b32 v{B+2*q+1}, v{WQ+4+q}, v{WQ+q}, s{sSELHI}")
    a(f"v_lshlrev_b32 v{t0}, 16, v{x1}")
    for c in range(8):
        a(f"v_dot2_f32_bf16 v{A+c}, v{B+c}, v{xp}, 0")
    for q in range(4):
        a(f"v_dot2_f32_bf16 v{A+8+2*q}, v{W1+q}, v{x1}, 0")
        a(f"v_dot2_f32_bf16 v{A+8+2*q+1}, v{W1+q}, v{t0}, 0")
    a("s_nop 1")
    for s in (0, 8):
        for c in range(4): a(f"v_permlane32_swap_b32 v{A+s+c}, v{A+s+c+4}")
    for s in (0, 8):
        for c in range(4): a(f"v_add_f32 v{A+s+c}, v{A+s+c}, v{A+s+c+4}")
    for s in (0, 8):
        for c in range(2): a(f"v_permlane16_swap_b32 v{A+s+c}, v{A+s+c+2}")
    for s in (0, 8):
        for c in range(2): a(f"v_add_f32 v{A+s+c}, v{A+s+c}, v{A+s+c+2}")
    a(f"""
    v_add_f32_dpp v{B}, v{A}, v{A} row_ror:8 row_mask:0xf bank_mask:0x3
    v_add_f32_dpp v{B+1}, v{A+1}, v{A+1} row_ror:8 row_mask:0xf bank_mask:0x3
    v_add_f32_dpp v{B}, v{A+8}, v{A+8} row_ror:8 row_mask:0xf bank_mask:0xc
    v_add_f32_dpp v{B+1}, v{A+9}, v{A+9} row_ror:8 row_mask:0xf bank_mask:0xc
    ds_write_b64 v{aP}, {vr(B,2)} offset:{L_QH}
    s_waitcnt lgkmcnt(0)
    s_barrier
    s_cmp_eq_u32 s{sW}, 0
    s_cbranch_scc0 L_nopub1
    """)
    a(f"v_lshlrev_b32 v{t0}, 4, v{lane}")
    for w in range(8):
        dst = (A if w < 4 else B) + 4*(w % 4)
        a(f"ds_read_b128 {vr(dst,4)}, v{t0} offset:{L_QH + 512*w}")
    a(f"""
    s_lshl_b32 s{sT0}, s{sHD}, 11
    s_lshl_b32 s{sT1}, s{sCG}, 8
    s_add_u32 s{sT0}, s{sT0}, s{sT1}
    s_add_u32 s{sT0}, s{sT0}, {Q1}
    s_lshl_b32 s{sT2}, s{sFG}, 11
    s_add_u32 s{sT1}, s{sT1}, s{sT2}
    s_add_u32 s{sT1}, s{sT1}, {H1 - 256}
    v_mov_b32 v{t1}, s{sT0}
    v_mov_b32 v{t2}, s{sT1}
    v_cmp_gt_u32 vcc, 16, v{lane}
    s_nop 1
    v_cndmask_b32 v{t1}, v{t2}, v{t1}, vcc
    v_add_u32 v{t1}, v{t1}, v{t0}
    s_waitcnt lgkmcnt(0)
    """)
    def tree8():
        for k in range(4):
            for p in (0, 2): a(f"v_pk_add_f32 {vr(A+4*k+p,2)}, {vr(A+4*k+p,2)}, {vr(B+4*k+p,2)}")
        for k in range(2):
            for p in (0, 2): a(f"v_pk_add_f32 {vr(A+4*k+p,2)}, {vr(A+4*k+p,2)}, {vr(A+8+4*k+p,2)}")
        for p in (0, 2): a(f"v_pk_add_f32 {vr(A+p,2)}, {vr(A+p,2)}, {vr(A+4+p,2)}")
    def tagit(r):
        for k in range(4): a(f"v_and_or_b32 v{r+k}, v{r+k}, s{sMASKB}, v{tg+k}")
    tree8(); tagit(A)
    a(f"""
    s_mov_b32 exec_hi, 0
    global_store_dwordx4 v{t1}, {vr(A,4)}, {sp(sWS)} sc1
    s_mov_b64 exec, -1
    L_nopub1:
    s_cmp_eq_u32 s{sW}, 2
    s_cbranch_scc0 L_nog2
    """)
    for q in range(4):
        a(f"v_lshlrev_b32 v{A+2*q}, 16, v{GX+q}")
        a(f"v_and_b32 v{A+2*q+1}, 0xffff0000, v{GX+q}")
        a(f"v_lshlrev_b32 v{B+2*q}, 16, v{GG+q}")
        a(f"v_and_b32 v{B+2*q+1}, 0xffff0000, v{GG+q}")
    for c in range(8): a(f"v_mul_f32 v{A+c}, v{A+c}, v{B+c}")
    for q in range(4): a(f"v_cvt_pk_bf16_f32 v{B+q}, v{A+2*q}, v{A+2*q+1}")
    a(f"v_mov_b32 v{t0}, 0x3f803f80")
    a(f"v_dot2_f32_bf16 v{t1}, v{B}, v{t0}, 0")
    for q in range(1, 4): a(f"v_dot2_f32_bf16 v{t1}, v{B+q}, v{t0}, v{t1}")
    a("s_nop 2")
    for d in ("quad_perm:[1,0,3,2]", "quad_perm:[2,3,0,1]", "row_ror:4", "row_ror:8"):
        a(f"v_add_f32_dpp v{t1}, v{t1}, v{t1} {d} {FULL}\ns_nop 1")
    for sw in ("16", "32"):
        a(f"v_mov_b32 v{t2}, v{t1}\ns_nop 1\nv_permlane{sw}_swap_b32 v{t1}, v{t2}\nv_add_f32 v{t1}, v{t1}, v{t2}")
    a(f"""
    v_cvt_pk_bf16_f32 v{t1}, v{t1}, v{t1}
    v_lshlrev_b32 v{t1}, 16, v{t1}
    v_mul_f32 v{t1}, 0xbfb8aa3b, v{t1}
    v_exp_f32 v{t1}, v{t1}
    s_nop 0
    v_add_f32 v{t1}, 1.0, v{t1}
    v_rcp_f32 v{t1}, v{t1}
    s_nop 0
    v_cvt_pk_bf16_f32 v{t1}, v{t1}, v{t1}
    v_lshlrev_b32 v{A}, 16, v{t1}
    v_sub_f32 v{t2}, 1.0, v{A}
    v_cvt_pk_bf16_f32 v{t2}, v{t2}, v{t2}
    v_lshlrev_b32 v{A+1}, 16, v{t2}
    v_mov_b32 v{t0}, 0
    ds_write_b64 v{t0}, {vr(A,2)} offset:{L_G}
    s_waitcnt lgkmcnt(0)
    L_nog2:
    s_barrier
    """)
    stamp()
    for t in range(4):
        a(f"global_load_dwordx4 {vr(V+4*t,4)}, v{aV}, {sp(sV)} offset:{1024*t} nt")
    a(f"""
    s_lshl_b32 s{sT0}, s{sH}, 13
    s_lshl_b32 s{sT1}, s{sW}, 8
    s_add_u32 s{sT0}, s{sT0}, s{sT1}
    s_add_u32 s{sT0}, s{sT0}, {Q1}
    v_and_b32 v{t0}, 15, v{lane}
    v_lshl_add_u32 v{aP}, v{t0}, 4, s{sT0}
    v_lshrrev_b32 v{t0}, 4, v{lane}
    v_lshl_add_u32 v{aP}, v{t0}, 11, v{aP}
    s_lshl_b32 s{sT0}, s{sFG}, 11
    s_lshl_b32 s{sT1}, s{sW}, 5
    s_add_u32 s{sT0}, s{sT0}, s{sT1}
    s_add_u32 s{sT0}, s{sT0}, {H1}
    v_bfe_u32 v{t0}, v{lane}, 2, 3
    v_lshl_add_u32 v{aP2}, v{t0}, 8, s{sT0}
    v_lshrrev_b32 v{t0}, 5, v{lane}
    v_lshl_add_u32 v{aP2}, v{t0}, 4, v{aP2}
    s_barrier
    global_load_dwordx4 {vr(PQ,4)}, v{aP}, {sp(sWS)} sc1
    global_load_dwordx4 {vr(PH,4)}, v{aP2}, {sp(sWS)} sc1
    global_load_ushort v{b1}, v{aB1}, {sp(sB1)}
    s_barrier
    global_load_dwordx4 {vr(WO,4)}, v{aWO0}, {sp(sWO)} nt
    global_load_dwordx4 {vr(WO+4,4)}, v{aWO1}, {sp(sWO)} nt
    global_load_dwordx4 {vr(W2,4)}, v{aW2}, {sp(sW2)} nt
    """)
    stamp()
    a("s_waitcnt vmcnt(6)")
    stamp()
    VT = B
    for q in range(4):
        a(f"v_perm_b32 v{VT+4*q}, v{V+4+q}, v{V+q}, s{sSELLO}")
        a(f"v_perm_b32 v{VT+4*q+1}, v{V+12+q}, v{V+8+q}, s{sSELLO}")
        a(f"v_perm_b32 v{VT+4*q+2}, v{V+4+q}, v{V+q}, s{sSELHI}")
        a(f"v_perm_b32 v{VT+4*q+3}, v{V+12+q}, v{V+8+q}, s{sSELHI}")
    a("s_waitcnt vmcnt(3)")
    def check16(r, dst):
        a(f"v_perm_b32 v{dst}, v{r+1}, v{r}, s{sSELA}")
        a(f"v_perm_b32 v{t3}, v{r+3}, v{r+2}, s{sSELB}")
        a(f"v_or_b32 v{dst}, v{dst}, v{t3}")
    a("L_chk1:")
    check16(PQ, t0); check16(PH, t1)
    a(f"""
    v_cmp_ne_u32 vcc, s{sTAG}, v{t0}
    v_cmp_ne_u32 {sp(sEX)}, s{sTAG}, v{t1}
    s_or_b64 vcc, vcc, {sp(sEX)}
    s_cbranch_vccz L_ok1
    s_add_u32 s{sSPIN}, s{sSPIN}, 1
    s_cmp_gt_u32 s{sSPIN}, {SPIN}
    s_cbranch_scc1 L_ok1
    global_load_dwordx4 {vr(PQ,4)}, v{aP}, {sp(sWS)} sc1
    global_load_dwordx4 {vr(PH,4)}, v{aP2}, {sp(sWS)} sc1
    s_waitcnt vmcnt(0)
    s_branch L_chk1
    L_ok1:
    """)
    stamp()
    a(f"""
    v_permlane32_swap_b32 v{PQ}, v{PQ+2}
    v_permlane32_swap_b32 v{PQ+1}, v{PQ+3}
    v_permlane16_swap_b32 v{PH}, v{PH+2}
    v_permlane16_swap_b32 v{PH+1}, v{PH+3}
    v_add_f32 v{PQ}, v{PQ}, v{PQ+2}
    v_add_f32 v{PQ+1}, v{PQ+1}, v{PQ+3}
    v_add_f32 v{PH}, v{PH}, v{PH+2}
    v_add_f32 v{PH+1}, v{PH+1}, v{PH+3}
    v_permlane16_swap_b32 v{PQ}, v{PQ+1}
    s_lshr_b32 s{sT0}, s{sW}, 1
    s_mul_i32 s{sT0}, s{sT0}, 320
    s_and_b32 s{sT1}, s{sW}, 1
    s_lshl_b32 s{sT1}, s{sT1}, 7
    s_add_u32 s{sT0}, s{sT0}, s{sT1}
    v_add_f32 v{PQ}, v{PQ}, v{PQ+1}
    v_and_b32 v{t0}, 15, v{lane}
    v_lshl_add_u32 v{t0}, v{t0}, 3, s{sT0}
    v_lshrrev_b32 v{t1}, 4, v{lane}
    v_lshl_add_u32 v{t0}, v{t1}, 1, v{t0}
    v_cvt_pk_bf16_f32 v{PQ}, v{PQ}, v{PQ}
    ds_write_b16 v{t0}, v{PQ} offset:{L_QB}
    v_add_f32_dpp v{PH+2}, v{PH}, v{PH} row_ror:8 row_mask:0xf bank_mask:0x3
    v_add_f32_dpp v{PH+2}, v{PH+1}, v{PH+1} row_ror:8 row_mask:0xf bank_mask:0xc
    """)
    a(f"""
    v_bfe_u32 v{t2}, v{lane}, 2, 2
    v_mul_u32_u24 v{t0}, 320, v{t2}
    v_lshl_add_u32 v{t0}, v{t1}, 6, v{t0}
    v_and_b32 v{t1}, 3, v{lane}
    v_lshl_add_u32 v{t0}, v{t1}, 4, v{t0}
    v_add_f32_dpp v{PH}, v{PH+2}, v{PH+2} row_half_mirror {FULL}
    s_waitcnt lgkmcnt(0)
    s_barrier
    ds_read_b128 {vr(PQ,4)}, v{t0} offset:{L_QB}
    v_mov_b32 v{t3}, 0
    ds_read_b64 {vr(WQ,2)}, v{t3} offset:{L_G}
    v_lshlrev_b32 v{aP}, 5, v{t2}
    s_lshl_b32 s{sT0}, s{sW}, 2
    v_add_u32 v{aP2}, s{sT0}, v{aP}
    s_mov_b32 s{sC1}, 0x3db504f3
    s_mov_b32 s{sC2}, 0x3fb8aa3b
    s_waitcnt lgkmcnt(1)
    """)
    for t in range(4):
        a(f"v_mfma_f32_16x16x32_bf16 {vr(A+4*t,4)}, {vr(K+4*t,4)}, {vr(PQ,4)}, 0")
    a(f"""
    v_cvt_pk_bf16_f32 v{PH}, v{PH}, v{PH}
    v_lshlrev_b32 v{b1}, 16, v{b1}
    v_lshlrev_b32 v{PH}, 16, v{PH}
    v_add_f32 v{PH}, v{PH}, v{b1}
    v_cvt_pk_bf16_f32 v{PH}, v{PH}, v{PH}
    v_lshlrev_b32 v{PH}, 16, v{PH}
    v_mul_f32 v{PH+1}, s{sC2}, v{PH}
    v_exp_f32 v{PH+1}, -|v{PH+1}|
    """)
    for t in range(4): a(f"v_cndmask_b32 v{A+4*t}, v{A+4*t}, v{A+4*t+1}, {sp(sM1)}")
    for t in range(4): a(f"v_cndmask_b32 v{A+4*t}, v{A+4*t}, v{A+4*t+2}, {sp(sM2)}")
    for t in range(4): a(f"v_cndmask_b32 v{A+4*t}, v{A+4*t}, v{A+4*t+3}, {sp(sM3)}")
    for t in range(4): a(f"v_add_f32_dpp v{A+4*t}, v{A+4*t}, v{A+4*t} quad_perm:[1,0,3,2] {FULL}")
    for t in range(4): a(f"v_add_f32_dpp v{A+4*t}, v{A+4*t}, v{A+4*t} quad_perm:[2,3,0,1] {FULL}")
    S = [A, A+4, A+8, A+12]
    def round4():
        a(f"v_cvt_pk_bf16_f32 v{A+1}, v{S[0]}, v{S[1]}")
        a(f"v_cvt_pk_bf16_f32 v{A+2}, v{S[2]}, v{S[3]}")
        a(f"v_lshlrev_b32 v{S[0]}, 16, v{A+1}")
        a(f"v_and_b32 v{S[1]}, 0xffff0000, v{A+1}")
        a(f"v_lshlrev_b32 v{S[2]}, 16, v{A+2}")
        a(f"v_and_b32 v{S[3]}, 0xffff0000, v{A+2}")
    round4()
    for t in range(4): a(f"v_mul_f32 v{S[t]}, s{sC1}, v{S[t]}")
    round4()
    a(f"""
    v_max_f32 v{t0}, v{S[0]}, v{S[1]}
    v_max3_f32 v{t0}, v{S[2]}, v{S[3]}, v{t0}
    v_mov_b32 v{t1}, v{t0}
    s_nop 1
    v_permlane16_swap_b32 v{t0}, v{t1}
    v_max_f32 v{t0}, v{t0}, v{t1}
    v_mov_b32 v{t1}, v{t0}
    s_nop 1
    v_permlane32_swap_b32 v{t0}, v{t1}
    v_max_f32 v{t0}, v{t0}, v{t1}
    s_mov_b64 exec, 0x1111
    ds_write_b32 v{aP2}, v{t0} offset:{L_MS}
    s_mov_b64 exec, -1
    """)
    a(f"""
    v_add_f32 v{PH+2}, v{PH+1}, v{PH+1}
    v_mul_f32 v{PH+1}, v{PH+1}, v{PH+1}
    v_cmp_lt_f32 vcc, 0, v{PH}
    v_add_f32 v{PH+3}, v{PH+1}, v{PH+1}
    s_waitcnt lgkmcnt(0)
    s_barrier
    ds_read_b128 {vr(K,4)}, v{aP} offset:{L_MS}
    ds_read_b128 {vr(K+4,4)}, v{aP} offset:{L_MS+16}
    v_cndmask_b32 v{PH+1}, v{PH+1}, 1.0, vcc
    v_cndmask_b32 v{PH+3}, 2.0, v{PH+3}, vcc
    v_add_f32 v{PH+1}, v{PH+1}, v{PH+2}
    v_add_f32 v{PH+3}, v{PH+3}, v{PH+1}
    v_rcp_f32 v{PH+3}, v{PH+3}
    v_mul_f32 v{PH+1}, v{PH+1}, v{PH}
    v_mul_f32 v{PH}, v{PH+1}, v{PH+3}
    v_cvt_pk_bf16_f32 v{PH}, v{PH}, v{PH}
    v_lshlrev_b32 v{PH}, 16, v{PH}
    v_mul_f32 v{PH}, v{PH}, v{WQ+1}
    s_waitcnt lgkmcnt(0)
    v_max3_f32 v{t0}, v{K}, v{K+1}, v{K+2}
    v_max3_f32 v{t1}, v{K+3}, v{K+4}, v{K+5}
    v_max3_f32 v{t0}, v{K+6}, v{K+7}, v{t0}
    v_max_f32 v{t0}, v{t0}, v{t1}
    v_mul_f32 v{WQ+2}, s{sC2}, v{t0}
    """)
    for t in range(4): a(f"v_fma_f32 v{S[t]}, v{S[t]}, s{sC2}, -v{WQ+2}")
    for t in range(4): a(f"v_exp_f32 v{S[t]}, v{S[t]}")
    a(f"""
    v_cvt_pk_bf16_f32 v{t0}, v{S[0]}, v{S[1]}
    v_add_f32 v{t2}, v{S[0]}, v{S[1]}
    v_cvt_pk_bf16_f32 v{t1}, v{S[2]}, v{S[3]}
    v_add_f32 v{t3}, v{S[2]}, v{S[3]}
    """)
    for k, m in enumerate((sM0, sM1, sM2, sM3)):
        a(f"v_cndmask_b32 v{K+2*k}, 0, v{t0}, {sp(m)}")
        a(f"v_cndmask_b32 v{K+2*k+1}, 0, v{t1}, {sp(m)}")
    a(f"""
    v_add_f32 v{t2}, v{t2}, v{t3}
    v_mov_b32 v{t3}, v{t2}
    v_mfma_f32_16x16x32_bf16 {vr(A,4)}, {vr(VT,4)}, {vr(K,4)}, 0
    v_mfma_f32_16x16x32_bf16 {vr(A+4,4)}, {vr(VT+8,4)}, {vr(K,4)}, 0
    v_mfma_f32_16x16x32_bf16 {vr(A,4)}, {vr(VT+4,4)}, {vr(K+4,4)}, {vr(A,4)}
    v_mfma_f32_16x16x32_bf16 {vr(A+4,4)}, {vr(VT+12,4)}, {vr(K+4,4)}, {vr(A+4,4)}
    v_permlane16_swap_b32 v{t2}, v{t3}
    v_add_f32 v{t2}, v{t2}, v{t3}
    v_mov_b32 v{t3}, v{t2}
    s_lshl_b32 s{sT0}, s{sW}, 11
    v_lshl_add_u32 v{t0}, v{lane}, 4, s{sT0}
    v_permlane32_swap_b32 v{t2}, v{t3}
    v_add_f32 v{t2}, v{t2}, v{t3}
    s_mov_b64 exec, 0x1111
    ds_write_b32 v{aP2}, v{t2} offset:{L_LS}
    s_mov_b64 exec, -1
    ds_write_b128 v{t0}, {vr(A,4)} offset:{L_OP}
    ds_write_b128 v{t0}, {vr(A+4,4)} offset:{L_OP+1024}
    s_cmp_lt_u32 s{sW}, 2
    s_waitcnt lgkmcnt(0)
    s_barrier
    s_cbranch_scc0 L_nopub2
    """)
    stamp()
    a(f"""
    s_lshl_b32 s{sT0}, s{sW}, 10
    v_lshl_add_u32 v{t0}, v{lane}, 4, s{sT0}
    ds_read_b128 {vr(K,4)}, v{aP} offset:{L_LS}
    ds_read_b128 {vr(K+4,4)}, v{aP} offset:{L_LS+16}
    """)
    for w in range(8):
        dst = (A if w < 4 else B) + 4*(w % 4)
        a(f"ds_read_b128 {vr(dst,4)}, v{t0} offset:{L_OP + 2048*w}")
    a(f"""
    s_and_b32 s{sT0}, s{sJ}, 15
    s_lshl_b32 s{sT0}, s{sT0}, 1
    s_lshr_b32 s{sT1}, s{sJ}, 4
    s_add_u32 s{sT2}, s{sT0}, s{sT1}
    s_lshl_b32 s{sT0}, s{sT2}, 9
    s_lshl_b32 s{sT1}, s{sH}, 16
    s_add_u32 s{sT0}, s{sT0}, s{sT1}
    s_lshl_b32 s{sT1}, s{sW}, 8
    s_add_u32 s{sT0}, s{sT0}, s{sT1}
    s_add_u32 s{sT0}, s{sT0}, {O2}
    v_lshl_add_u32 v{t1}, v{aP}, 9, s{sT0}
    v_lshrrev_b32 v{t2}, 4, v{lane}
    v_lshl_add_u32 v{t1}, v{t2}, 6, v{t1}
    v_and_b32 v{t2}, 3, v{lane}
    v_lshl_add_u32 v{t1}, v{t2}, 4, v{t1}
    s_lshl_b32 s{sT2}, s{sT2}, 3
    s_lshl_b32 s{sT1}, s{sH}, 10
    s_add_u32 s{sT2}, s{sT2}, s{sT1}
    s_add_u32 s{sT2}, s{sT2}, {ML}
    v_lshl_add_u32 v{t2}, v{aP}, 3, s{sT2}
    s_waitcnt lgkmcnt(8)
    v_pk_add_f32 {vr(K,2)}, {vr(K,2)}, {vr(K+2,2)}
    v_pk_add_f32 {vr(K+4,2)}, {vr(K+4,2)}, {vr(K+6,2)}
    v_pk_add_f32 {vr(K,2)}, {vr(K,2)}, {vr(K+4,2)}
    v_add_f32 v{K}, v{K}, v{K+1}
    v_rcp_f32 v{K+2}, v{K}
    v_log_f32 v{K+4}, v{K}
    v_mov_b32 v{K+5}, s{sTAG}
    v_add_f32 v{K+4}, v{K+4}, v{WQ+2}
    s_cmp_eq_u32 s{sW}, 0
    s_cbranch_scc0 L_noml
    s_mov_b64 exec, 0x1111
    global_store_dwordx2 v{t2}, {vr(K+4,2)}, {sp(sWS)} sc1
    s_mov_b64 exec, -1
    L_noml:
    s_waitcnt lgkmcnt(0)
    """)
    tree8()
    for k in range(4): a(f"v_mul_f32 v{A+k}, v{A+k}, v{K+2}")
    tagit(A)
    a(f"""
    global_store_dwordx4 v{t1}, {vr(A,4)}, {sp(sWS)} sc1
    L_nopub2:
    """)
    stamp()
    a(f"""
    s_lshl_b32 s{sT0}, s{sHD}, 14
    s_lshl_b32 s{sT1}, s{sW}, 6
    s_add_u32 s{sT0}, s{sT0}, s{sT1}
    s_add_u32 s{sT0}, s{sT0}, {O2}
    v_lshrrev_b32 v{t0}, 2, v{lane}
    v_lshl_add_u32 v{aP}, v{t0}, 10, s{sT0}
    v_and_b32 v{t1}, 3, v{lane}
    v_lshl_add_u32 v{aP}, v{t1}, 4, v{aP}
    s_lshl_b32 s{sT0}, s{sHD}, 8
    s_add_u32 s{sT0}, s{sT0}, {ML}
    v_lshl_add_u32 v{aP2}, v{t0}, 4, s{sT0}
    s_waitcnt vmcnt(0)
    """)
    stamp()
    for q in range(4):
        a(f"v_perm_b32 v{B+2*q}, v{WO+4+q}, v{WO+q}, s{sSELLO}")
        a(f"v_perm_b32 v{B+2*q+1}, v{WO+4+q}, v{WO+q}, s{sSELHI}")
    a(f"""
    global_load_dwordx4 {vr(PQ,4)}, v{aP2}, {sp(sWS)} sc1
    global_load_dwordx4 {vr(K,4)}, v{aP}, {sp(sWS)} sc1
    global_load_dwordx4 {vr(K+4,4)}, v{aP}, {sp(sWS)} offset:512 sc1
    """)
    for q in range(4):
        a(f"v_lshlrev_b32 v{ACCB+2*q}, 16, v{W2+q}")
        a(f"v_and_b32 v{ACCB+2*q+1}, 0xffff0000, v{W2+q}")
    for c in range(8): a(f"v_mul_f32 v{ACCB+c}, v{ACCB+c}, v{PH}")
    for c in range(8): a(f"v_and_b32 v{ACCB+c}, s{sMLP}, v{ACCB+c}")
    a("L_chk2:\ns_waitcnt vmcnt(0)")
    check16(K, t0); check16(K+4, t1)
    a(f"""
    v_cmp_ne_u32 vcc, s{sTAG}, v{t0}
    v_cmp_ne_u32 {sp(sEX)}, s{sTAG}, v{t1}
    s_or_b64 vcc, vcc, {sp(sEX)}
    v_cmp_ne_u32 {sp(sEX)}, s{sTAG}, v{PQ+1}
    s_or_b64 vcc, vcc, {sp(sEX)}
    v_cmp_ne_u32 {sp(sEX)}, s{sTAG}, v{PQ+3}
    s_or_b64 vcc, vcc, {sp(sEX)}
    s_cbranch_vccz L_ok2
    s_add_u32 s{sSPIN}, s{sSPIN}, 1
    s_cmp_gt_u32 s{sSPIN}, {SPIN}
    s_cbranch_scc1 L_ok2
    global_load_dwordx4 {vr(PQ,4)}, v{aP2}, {sp(sWS)} sc1
    global_load_dwordx4 {vr(K,4)}, v{aP}, {sp(sWS)} sc1
    global_load_dwordx4 {vr(K+4,4)}, v{aP}, {sp(sWS)} offset:512 sc1
    s_branch L_chk2
    L_ok2:
    """)
    stamp()
    a(f"""
    v_max_f32 v{t0}, v{PQ}, v{PQ+2}
    s_nop 1
    v_max_f32_dpp v{t0}, v{t0}, v{t0} row_ror:4 {FULL}
    s_nop 1
    v_max_f32_dpp v{t0}, v{t0}, v{t0} row_ror:8 {FULL}
    v_mov_b32 v{t1}, v{t0}
    s_nop 1
    v_permlane16_swap_b32 v{t0}, v{t1}
    v_max_f32 v{t0}, v{t0}, v{t1}
    v_mov_b32 v{t1}, v{t0}
    s_nop 1
    v_permlane32_swap_b32 v{t0}, v{t1}
    v_max_f32 v{t0}, v{t0}, v{t1}
    v_sub_f32 v{PQ}, v{PQ}, v{t0}
    v_sub_f32 v{PQ+2}, v{PQ+2}, v{t0}
    v_exp_f32 v{PQ}, v{PQ}
    v_exp_f32 v{PQ+2}, v{PQ+2}
    s_nop 0
    """)
    for k in range(4): a(f"v_mul_f32 v{K+k}, v{K+k}, v{PQ}")
    a(f"v_add_f32 v{t0}, v{PQ}, v{PQ+2}")
    for k in range(4): a(f"v_fmac_f32 v{K+k}, v{K+4+k}, v{PQ+2}")
    a(f"""
    v_add_f32_dpp v{t0}, v{t0}, v{t0} row_ror:4 {FULL}
    s_nop 0
    v_permlane32_swap_b32 v{K}, v{K+2}
    v_permlane32_swap_b32 v{K+1}, v{K+3}
    v_add_f32_dpp v{t0}, v{t0}, v{t0} row_ror:8 {FULL}
    v_add_f32 v{K}, v{K}, v{K+2}
    v_add_f32 v{K+1}, v{K+1}, v{K+3}
    v_mov_b32 v{t1}, v{t0}
    s_nop 0
    v_permlane16_swap_b32 v{K}, v{K+1}
    v_permlane16_swap_b32 v{t0}, v{t1}
    v_add_f32 v{K}, v{K}, v{K+1}
    v_add_f32 v{t0}, v{t0}, v{t1}
    v_mov_b32 v{t1}, v{t0}
    v_add_f32_dpp v{K}, v{K}, v{K} row_ror:4 {FULL}
    s_nop 0
    v_permlane32_swap_b32 v{t0}, v{t1}
    v_add_f32_dpp v{K}, v{K}, v{K} row_ror:8 {FULL}
    v_add_f32 v{t0}, v{t0}, v{t1}
    v_rcp_f32 v{t0}, v{t0}
    s_nop 0
    v_mul_f32 v{K}, v{K}, v{t0}
    v_mov_b32 v{K+1}, v{K}
    s_nop 1
    v_permlane16_swap_b32 v{K}, v{K+1}
    v_cvt_pk_bf16_f32 v{K}, v{K}, v{K+1}
    s_nop 1
    v_mov_b32_dpp v{t0}, v{K} quad_perm:[0,0,0,0] row_mask:0x5 bank_mask:0x3
    v_mov_b32_dpp v{t0}, v{K} quad_perm:[1,1,1,1] row_mask:0x5 bank_mask:0xc
    v_mov_b32_dpp v{t0}, v{K} quad_perm:[2,2,2,2] row_mask:0xa bank_mask:0x3
    v_mov_b32_dpp v{t0}, v{K} quad_perm:[3,3,3,3] row_mask:0xa bank_mask:0xc
    """)
    for c in range(8): a(f"v_dot2_f32_bf16 v{A+c}, v{B+c}, v{t0}, 0")
    for c in range(8): a(f"v_fmac_f32 v{ACCB+c}, v{A+c}, v{WQ}")
    a(f"""
    s_lshl_b32 s{sT0}, s{sW}, 8
    v_lshl_add_u32 v{t1}, v{lc}, 1, s{sT0}
    """)
    for c in range(4): a(f"v_permlane32_swap_b32 v{ACCB+c}, v{ACCB+c+4}")
    for c in range(4): a(f"v_add_f32 v{ACCB+c}, v{ACCB+c}, v{ACCB+c+4}")
    a(f"v_lshl_add_u32 v{t1}, v{lr}, 2, v{t1}")
    for c in range(2): a(f"v_permlane16_swap_b32 v{ACCB+c}, v{ACCB+c+2}")
    for c in range(2): a(f"v_add_f32 v{ACCB+c}, v{ACCB+c}, v{ACCB+c+2}")
    a(f"""
    s_nop 0
    v_add_f32_dpp v{t0}, v{ACCB}, v{ACCB} row_ror:8 row_mask:0xf bank_mask:0x3
    v_add_f32_dpp v{t0}, v{ACCB+1}, v{ACCB+1} row_ror:8 row_mask:0xf bank_mask:0xc
    ds_write_b32 v{t1}, v{t0} offset:{L_OUT}
    s_cmp_eq_u32 s{sW}, 0
    s_waitcnt lgkmcnt(0)
    s_barrier
    s_cbranch_scc0 L_fin
    v_lshlrev_b32 v{t0}, 4, v{lane}
    s_mov_b64 exec, 0xffff
    """)
    for w in range(8):
        dst = (A if w < 4 else B) + 4*(w % 4)
        a(f"ds_read_b128 {vr(dst,4)}, v{t0} offset:{L_OUT + 256*w}")
    a(f"""
    s_lshl_b32 s{sT0}, s{sCG}, 13
    s_lshl_b32 s{sT1}, s{sHD}, 8
    s_add_u32 s{sT0}, s{sT0}, s{sT1}
    s_add_u32 s{sT0}, s{sT0}, {O3}
    v_add_u32 v{t1}, s{sT0}, v{t0}
    s_waitcnt lgkmcnt(0)
    """)
    tree8(); tagit(A)
    a(f"""
    global_store_dwordx4 v{t1}, {vr(A,4)}, {sp(sWS)} sc1
    s_mov_b64 exec, -1
    """)
    stamp()
    a(f"""
    s_cmp_lt_u32 s{sJ}, 16
    s_cbranch_scc0 L_fin
    s_lshl_b32 s{sT0}, s{sH}, 13
    s_lshl_b32 s{sT1}, s{sJ}, 4
    s_add_u32 s{sT0}, s{sT0}, s{sT1}
    s_add_u32 s{sT0}, s{sT0}, {O3}
    v_lshl_add_u32 v{aP}, v{lane}, 8, s{sT0}
    s_lshl_b32 s{sT0}, s{sH}, 7
    s_lshl_b32 s{sT1}, s{sJ}, 3
    s_add_u32 s{sT0}, s{sT0}, s{sT1}
    v_lshrrev_b32 v{t2}, 2, v{lane}
    v_add_u32 v{aP2}, s{sT0}, v{t2}
    s_mov_b32 exec_hi, 0
    L_chk3:
    global_load_dwordx4 {vr(K,4)}, v{aP}, {sp(sWS)} sc1
    s_add_u32 s{sSPIN}, s{sSPIN}, 1
    s_cmp_gt_u32 s{sSPIN}, {SPIN}
    s_cbranch_scc1 L_ok3
    s_waitcnt vmcnt(0)
    """)
    check16(K, t0)
    a(f"""
    v_cmp_ne_u32 vcc, s{sTAG}, v{t0}
    s_cbranch_vccnz L_chk3
    L_ok3:
    s_waitcnt vmcnt(0)
    v_permlane16_swap_b32 v{K}, v{K+2}
    v_permlane16_swap_b32 v{K+1}, v{K+3}
    v_add_f32 v{K}, v{K}, v{K+2}
    v_add_f32 v{K+1}, v{K+1}, v{K+3}
    """)
    for d in ("quad_perm:[1,0,3,2]", "quad_perm:[2,3,0,1]", "row_ror:4", "row_ror:8"):
        a(f"s_nop 0\nv_add_f32_dpp v{K}, v{K}, v{K} {d} {FULL}\nv_add_f32_dpp v{K+1}, v{K+1}, v{K+1} {d} {FULL}")
    a(f"""
    v_cvt_pk_bf16_f32 v{K}, v{K}, v{K+1}
    s_mov_b64 exec, 0x10001
    global_store_dword v{aP2}, v{K}, {sp(sOUT)}
    s_cmp_eq_u32 s2, 0
    s_cbranch_scc0 L_fin
    s_mov_b64 exec, 1
    v_mov_b32 v{t0}, 0
    v_mov_b32 v{t1}, s{sTAG}
    global_store_dword v{t0}, v{t1}, {sp(sWS)} offset:{EPOCH}
    L_fin:
    """)
    if stamps:
        stamp()
        n = nst[0]
        a("s_mov_b64 exec, -1\ns_waitcnt lgkmcnt(0)")
        for i in range(16):
            if i < n:
                a(f"v_writelane_b32 v{t0}, s{64+2*i}, {2*i}\nv_writelane_b32 v{t0}, s{65+2*i}, {2*i+1}")
            elif i == 15:
                a(f"v_writelane_b32 v{t0}, s{sSPIN}, {2*i}\nv_writelane_b32 v{t0}, 0, {2*i+1}")
            else:
                a(f"v_writelane_b32 v{t0}, 0, {2*i}\nv_writelane_b32 v{t0}, 0, {2*i+1}")
        a(f"""
        s_lshl_b32 s{sT0}, s2, 3
        s_add_u32 s{sT0}, s{sT0}, s{sW}
        s_lshl_b32 s{sT0}, s{sT0}, 7
        s_add_u32 s{sT0}, s{sT0}, {STAMP}
        v_lshl_add_u32 v{t1}, v{lane}, 2, s{sT0}
        s_mov_b32 exec_hi, 0
        global_store_dword v{t1}, v{t0}, {sp(sWS)}
        """)
    a("L_end:\ns_endpgm")
    return wrap(a.text(), 256, 512, LDS, max(nv, 8)), nv

if __name__ == "__main__":
    s, nv = gen(False); open("k1.s", "w").write(s)
    s, nv = gen(True); open("k1s.s", "w").write(s)
    print("vgprs", nv)
```
